```python
import torch

def _softmax(x, axis=-1):
    return torch.softmax(x, dim=axis)
def _gelu(x):
    return torch.nn.functional.gelu(x, approximate="tanh")
def _silu(x):
    return torch.nn.functional.silu(x)
def _sigmoid(x):
    return torch.sigmoid(x)
def _layernorm(x, axis=-1, eps=1e-5):
    m = x.mean(dim=axis, keepdim=True)
    v = x.var(dim=axis, keepdim=True, unbiased=False)
    return (x - m) / torch.sqrt(v + eps)
def _scatter_add(tgt, idx, src, axis=0):
    return tgt.clone().index_add_(axis, idx, src)
def _segment_sum(src, seg, n):
    out = torch.zeros((n,) + src.shape[1:], dtype=src.dtype)
    return out.index_add_(0, seg, src)
def _pad(x, pw):
    flat = tuple(v for pair in reversed(pw) for v in pair)
    return torch.nn.functional.pad(x, flat)

kernel_name = 'sequential_preLN__sliding_block__dense_activation_squared_relu__prompt'

def setup_inputs():

    _w = (lambda a: (lambda t: t.to(torch.bfloat16) if t.is_floating_point() else t)(torch.as_tensor(a)))
    def _A_setup():
        B, S, D = 1, 2048, 448
        return {
            "x": _w((lambda *s: torch.randn(*s, dtype=torch.bfloat16) * 0.05)(B, S, D)),
            "wqkv": _w((lambda *s: torch.randn(*s, dtype=torch.bfloat16) * 0.05)(D, 3 * D)),
            "wo": _w((lambda *s: torch.randn(*s, dtype=torch.bfloat16) * 0.05)(D, D)),
        }
    _A_in = _A_setup()

    def _B_setup():
        B, S, D, F = 1, 2048, 448, 1792
        return {
            "x": _w((lambda *s: torch.randn(*s, dtype=torch.bfloat16) * 0.05)(B, S, D)),
            "w1": _w((lambda *s: torch.randn(*s, dtype=torch.bfloat16) * 0.05)(D, F)),
            "b1": _w((lambda *s: torch.randn(*s, dtype=torch.bfloat16) * 0.4)(F)),
            "w2": _w((lambda *s: torch.randn(*s, dtype=torch.bfloat16) * 0.05)(F, D)),
            "b2": _w((lambda *s: torch.randn(*s, dtype=torch.bfloat16) * 1.6)(D)),
        }
    _B_in = _B_setup()

    return {
        "A_x": _A_in["x"],
        "A_wqkv": _A_in["wqkv"],
        "A_wo": _A_in["wo"],
        "B_x": _B_in["x"],
        "B_w1": _B_in["w1"],
        "B_b1": _B_in["b1"],
        "B_w2": _B_in["w2"],
        "B_b2": _B_in["b2"],
    }

def reference(A_x, A_wqkv, A_wo, B_x, B_w1, B_b1, B_w2, B_b2):
    def _A_ref(x, wqkv, wo):
        B, S, D = x.shape
        H = 16; Dh = D // H; W = 256
        qkv = (lambda x, *d: x.permute(*d))((x @ wqkv).reshape(B, S, 3, H, Dh), 2, 0, 3, 1, 4)
        q, k, v = qkv[0], qkv[1], qkv[2]
        scores = torch.einsum("bhqd,bhkd->bhqk", q, k) * (Dh ** -0.5)
        idx = torch.arange(S)
        mask = (idx[:, None] - idx[None, :] >= 0) & (idx[:, None] - idx[None, :] < W)
        scores = torch.where(mask[None, None], scores, -1e9)
        p = _softmax(scores, axis=-1)
        o = torch.einsum("bhqk,bhkd->bhqd", p, v)
        return (lambda x, *d: x.permute(*d))(o, 0, 2, 1, 3).reshape(B, S, D) @ wo

    def _B_ref(x, w1, b1, w2, b2):
        h = torch.einsum("bsd,df->bsf", x, w1) + b1
        zero = torch.zeros_like(h)
        r = torch.where(h > zero, h, zero)
        h = r * r
        out = torch.einsum("bsf,fd->bsd", h, w2) + b2
        return out

    x = A_x
    h = x + _A_ref(_layernorm(x, axis=-1), A_wqkv, A_wo)
    h2 = h + _B_ref(_layernorm(h, axis=-1), B_w1, B_b1, B_w2, B_b2)
    return h2
```

```python
class Asm:
    def __init__(self):
        self.lines = []
        self.lbl = 0
    def __call__(self, s, *a):
        for ln in s.strip("\n").split("\n"):
            self.lines.append(ln)
    def label(self, name):
        self.lines.append(f"{name}:")
    def newlabel(self, base="L"):
        self.lbl += 1
        return f"{base}_{self.lbl}"
    def comment(self, s):
        self.lines.append("; " + s)
    def text(self):
        return "\n".join(self.lines) + "\n"

def kernel_desc(name, vgpr, sgpr=96, accum=None, wg_y=False):
    if accum is None:
        accum = min(256, (vgpr + 3) // 4 * 4)
    s = [".p2align 6", f".amdhsa_kernel {name}",
         f"  .amdhsa_next_free_vgpr {vgpr}", f"  .amdhsa_next_free_sgpr {sgpr}",
         f"  .amdhsa_accum_offset {accum}", "  .amdhsa_group_segment_fixed_size 0",
         "  .amdhsa_kernarg_size 88", "  .amdhsa_user_sgpr_count 2",
         "  .amdhsa_user_sgpr_kernarg_segment_ptr 1", "  .amdhsa_system_sgpr_workgroup_id_x 1"]
    if wg_y:
        s.append("  .amdhsa_system_sgpr_workgroup_id_y 1")
    s.append(".end_amdhsa_kernel")
    return "\n".join(s)

def srd(a, dst, base, nbytes):
    a(f"s_mov_b32 s{dst}, s{base}")
    a(f"s_and_b32 s{dst+1}, s{base+1}, 0xffff")
    a(f"s_mov_b32 s{dst+2}, {nbytes}")
    a(f"s_mov_b32 s{dst+3}, 0x00020000")
```

```python
import sys
from asmlib import Asm, kernel_desc, srd

NAME = "sequential_preLN__sliding_block__dense_activation_squared_relu__prompt"

WS_FLAGS = 0x0
WS_Q   = 0x100000
WS_K   = 0x300000
WS_V   = 0x500000
WS_O   = 0x700000
WS_H   = 0x900000
WS_HID = 0xB00000
WS_WO  = 0x1200000
WS_W1  = 0x1280000
WS_W2  = 0x1420000
WS_SIZE = 0x2000000

QSCALE = (28 ** -0.5) * 1.4426950408889634

import struct
def f32(x):
    return "0x%08x" % struct.unpack("<I", struct.pack("<f", x))[0]

def vr(b, n=4):
    return f"v[{b}:{b+n-1}]"

STAMPS = False
WS_STAMP = 0x20000
def stamp(a, i):
    if STAMPS:
        a(f"s_memrealtime s[{64+2*i}:{65+2*i}]")
def stamp_flush(a, n, kidx, srdreg=20, wave_reg=26, label="X"):
    if STAMPS:
        a("s_waitcnt lgkmcnt(0)")
        a(f"s_cmp_lg_u32 s{wave_reg}, 0\ns_cbranch_scc1 STF_{label}")
        for i in range(n):
            a(f"v_mov_b32 v{200+i}, s{64+2*i}")
        a(f"s_lshl_b32 s60, s2, 6\ns_add_u32 s60, s60, {WS_STAMP + kidx*16384}")
        a("v_mov_b32 v199, 0")
        for i in range(0, n, 4):
            a(f"buffer_store_dwordx4 v[{200+i}:{203+i}], v199, s[{srdreg}:{srdreg+3}], s60 offen offset:{4*i}")
        a(f"STF_{label}:")

def decode_gj(a, sg, sj, tmp):
    a(f"s_and_b32 s{sg}, s2, 7")
    a(f"s_lshl_b32 s{sg}, s{sg}, 2")
    a(f"s_lshr_b32 s{tmp}, s2, 6")
    a(f"s_add_u32 s{sg}, s{sg}, s{tmp}")
    a(f"s_lshr_b32 s{sj}, s2, 3")
    a(f"s_and_b32 s{sj}, s{sj}, 7")

def allreduce_g(a, reg, tmp, op="v_add_f32"):
    a(f"v_mov_b32 v{tmp}, v{reg}")
    a("s_nop 1")
    a(f"v_permlane32_swap_b32 v{reg}, v{tmp}")
    a("s_nop 0")
    a(f"{op} v{reg}, v{reg}, v{tmp}")
    a(f"v_mov_b32 v{tmp}, v{reg}")
    a("s_nop 1")
    a(f"v_permlane16_swap_b32 v{reg}, v{tmp}")
    a("s_nop 0")
    a(f"{op} v{reg}, v{reg}, v{tmp}")

def emit_k1(a):
    a(".globl k1_kernel\n.p2align 8\n.type k1_kernel,@function\nk1_kernel:")
    a("s_cmp_ge_u32 s2, 256\ns_cbranch_scc1 K1_END")
    stamp(a, 0)
    a("s_load_dwordx4 s[4:7], s[0:1], 0")
    a("s_load_dwordx2 s[8:9], s[0:1], 80")
    a("s_load_dwordx2 s[30:31], s[0:1], 16")
    a("s_load_dwordx2 s[32:33], s[0:1], 32")
    a("s_load_dwordx2 s[34:35], s[0:1], 48")
    decode_gj(a, 24, 25, 26)
    a("v_and_b32 v1, 63, v0")
    a("v_lshrrev_b32 v9, 6, v0")
    a("v_and_b32 v2, 15, v1")
    a("v_readfirstlane_b32 s26, v9")
    a("v_lshrrev_b32 v3, 4, v1")
    a("s_waitcnt lgkmcnt(0)")
    srd(a, 20, 8, WS_SIZE)
    a("s_cmp_eq_u32 s25, 7\ns_cbranch_scc1 K1_RELAYOUT")
    srd(a, 12, 4, 2048 * 896)
    srd(a, 16, 6, 448 * 2688)
    a("s_lshr_b32 s27, s26, 2")
    a("s_and_b32 s28, s26, 3")
    a("v_lshrrev_b32 v9, 3, v1")
    a("v_and_b32 v10, 7, v1")
    a("v_xor_b32 v11, v10, v9")
    a("v_lshlrev_b32 v11, 4, v11")
    a("v_mul_u32_u24 v4, 896, v9")
    a("v_add_u32 v4, v4, v11")
    a("v_bfe_u32 v11, v9, 1, 1")
    a("s_and_b32 s29, s26, 1\ns_lshl_b32 s29, s29, 1")
    a("v_or_b32 v11, s29, v11")
    a("v_lshlrev_b32 v11, 1, v11")
    a("v_xor_b32 v11, v10, v11")
    a("v_lshlrev_b32 v11, 4, v11")
    a("v_mul_u32_u24 v5, 2688, v9")
    a("v_add_u32 v5, v5, v11")
    a("s_lshl_b32 s36, s24, 6\ns_lshl_b32 s38, s26, 3\ns_add_u32 s36, s36, s38\ns_mul_i32 s36, s36, 896")
    a("s_mul_i32 s37, s38, 2688\ns_lshl_b32 s39, s25, 7\ns_add_u32 s37, s37, s39")
    a("s_lshl_b32 s40, s26, 10")
    XB, WB, STB = 0, 57344, 155648
    def dma_x(s):
        a(f"s_add_u32 m0, s40, {XB + s*8192}")
        a(f"s_add_u32 s41, s36, {128*s}")
        a(f"buffer_load_dwordx4 v4, s[12:15], s41 offen lds")
    def dma_w(s):
        slot = s % 4
        for blk in range(3):
            a(f"s_add_u32 m0, s40, {WB + slot*24576 + blk*8192}")
            a(f"s_add_u32 s41, s37, {64*s*2688 + 896*blk}")
            a(f"buffer_load_dwordx4 v5, s[16:19], s41 offen lds")
    dma_w(0)
    for s in range(7):
        dma_x(s)
    dma_w(1); dma_w(2); dma_w(3)
    a("v_and_b32 v9, 7, v2\nv_xor_b32 v9, v9, v3\nv_lshlrev_b32 v9, 4, v9")
    a("s_lshl_b32 s41, s27, 5")
    a("v_add_u32 v10, s41, v2\nv_lshlrev_b32 v10, 7, v10")
    a("v_add_u32 v6, v10, v9\nv_xor_b32 v7, 64, v6")
    a("v_lshrrev_b32 v9, 2, v2")
    a("v_and_b32 v10, 3, v2")
    a("v_bfe_u32 v11, v9, 1, 1")
    a("v_and_b32 v8, 1, v3\nv_lshlrev_b32 v8, 1, v8\nv_or_b32 v11, v11, v8\nv_lshlrev_b32 v11, 1, v11")
    a("v_lshrrev_b32 v8, 1, v10")
    a("s_lshl_b32 s41, s28, 1")
    a("v_add_u32 v8, s41, v8")
    a("v_xor_b32 v8, v8, v11\nv_lshlrev_b32 v8, 4, v8")
    a("v_and_b32 v10, 1, v10\nv_lshlrev_b32 v10, 3, v10\nv_add_u32 v8, v8, v10")
    a("v_lshlrev_b32 v10, 3, v3\nv_add_u32 v10, v10, v9\nv_lshlrev_b32 v10, 7, v10")
    a(f"v_add_u32 v8, v8, v10\nv_add_u32 v8, {WB}, v8")
    ONES = 12
    XF = 16
    WF = 32
    ACC = 56
    QKA, VA = 96, 97
    SQ = 100
    SV = 104
    for i in range(4): a(f"v_mov_b32 v{ONES+i}, 0x3f803f80")
    for i in range(36): a(f"v_mov_b32 v{ACC+i}, 0")
    a("s_lshl_b32 s41, s25, 4\ns_lshl_b32 s42, s28, 2\ns_add_u32 s41, s41, s42")
    a("v_add_u32 v10, s41, v3")
    a("v_mul_u32_u24 v11, 147, v10\nv_lshrrev_b32 v11, 10, v11")
    a("v_mul_u32_u24 v16, 7, v11\nv_sub_u32 v10, v10, v16")
    a("v_cmp_eq_u32 s[46:47], 6, v10")
    a("v_lshlrev_b32 v11, 17, v11")
    a("v_lshrrev_b32 v16, 1, v10\nv_lshlrev_b32 v16, 8, v16\nv_add_u32 v11, v11, v16")
    a("v_and_b32 v10, 1, v10\nv_lshlrev_b32 v10, 3, v10\nv_add_u32 v11, v11, v10")
    a(f"v_lshlrev_b32 v16, 4, v2\nv_add_u32 v{QKA}, v11, v16")
    a("s_lshl_b32 s41, s25, 6\ns_lshl_b32 s42, s28, 4\ns_add_u32 s41, s41, s42")
    a("v_add_u32 v10, s41, v2")
    a("s_movk_i32 s42, 2341")
    a("v_mul_u32_u24 v16, s42, v10\nv_lshrrev_b32 v16, 16, v16")
    a("v_mul_u32_u24 v17, 28, v16\nv_sub_u32 v10, v10, v17")
    a("v_cmp_eq_u32 s[48:49], 27, v10")
    a("v_lshlrev_b32 v16, 17, v16")
    a("v_lshrrev_b32 v17, 4, v10\nv_lshlrev_b32 v17, 10, v17\nv_add_u32 v16, v16, v17")
    a("v_and_b32 v10, 15, v10\nv_lshlrev_b32 v17, 4, v3\nv_add_u32 v10, v10, v17\nv_lshlrev_b32 v10, 4, v10")
    a(f"v_add_u32 v{VA}, v16, v10")
    a("s_lshl_b32 s41, s24, 2\ns_lshl_b32 s42, s27, 1\ns_add_u32 s41, s41, s42\ns_lshl_b32 s41, s41, 10")
    a(f"s_add_u32 s42, s41, {WS_Q}\ns_add_u32 s43, s41, {WS_K}")
    a("s_lshl_b32 s44, s24, 1\ns_add_u32 s44, s44, s27\ns_lshl_b32 s44, s44, 11")
    a(f"s_add_u32 s44, s44, {WS_V}")
    a("v_lshlrev_b32 v9, 4, v1\nv_add_u32 v9, s40, v9")
    a("s_waitcnt vmcnt(9)")
    stamp(a, 2)
    for s in range(7):
        a(f"ds_read_b128 {vr(24+4*s)}, v9 offset:{XB + s*8192}")
    a("v_mov_b32 v10, 0\nv_mov_b32 v11, 0\nv_mov_b32 v16, 0\nv_mov_b32 v17, 0")
    for s in range(7):
        a(f"s_waitcnt lgkmcnt({6-s})")
        for d in range(4):
            p = (d & 1) * 6
            a(f"v_dot2c_f32_bf16 v{10+p}, v{24+4*s+d}, v{ONES}")
            a(f"v_dot2c_f32_bf16 v{11+p}, v{24+4*s+d}, v{24+4*s+d}")
    a("s_nop 2")
    a("v_add_f32 v10, v10, v16\nv_add_f32 v11, v11, v17")
    for perm in ("quad_perm:[1,0,3,2]", "quad_perm:[2,3,0,1]", "row_half_mirror"):
        a("s_nop 1")
        a(f"v_add_f32_dpp v10, v10, v10 {perm} row_mask:0xf bank_mask:0xf")
        a(f"v_add_f32_dpp v11, v11, v11 {perm} row_mask:0xf bank_mask:0xf")
    a(f"v_mul_f32 v10, {f32(1.0/448)}, v10")
    a(f"v_mul_f32 v11, {f32(1.0/448)}, v11")
    a("v_fma_f32 v11, -v10, v10, v11")
    a("v_max_f32 v11, 0, v11")
    a(f"v_add_f32 v11, {f32(1e-5)}, v11")
    a("v_rsq_f32 v16, v11")
    a("s_nop 0")
    a("v_mul_f32 v17, v10, v16\nv_sub_f32 v17, 0, v17")
    a("v_lshrrev_b32 v9, 3, v1\nv_lshlrev_b32 v9, 3, v9")
    a(f"s_lshl_b32 s41, s26, 6\ns_add_u32 s41, s41, {STB}\nv_add_u32 v9, s41, v9")
    a(f"ds_write_b64 v9, v[16:17]")
    def xf(kk, rt): return XF + (kk*2 + rt)*4
    def wf(kk, blk): return WF + (kk*3 + blk)*4
    def acc(blk, i): return ACC + (blk*3 + i)*4
    waits = [9, 9, 9, 6, 3, 0, 0]
    waits = [9, 6, 6, 6, 6, 3, 0]
    for s in range(7):
        slot = s % 4
        a(f"s_waitcnt vmcnt({waits[s]}) lgkmcnt(0)")
        a("s_barrier")
        if s == 0: stamp(a, 3)
        if s == 6: stamp(a, 4)
        if 1 <= s <= 3:
            dma_w(s + 3)
        a(f"v_add_u32 v9, {slot*24576}, v8")
        def reads(kk, part):
            lst = []
            xa = 6 if kk == 0 else 7
            lst.append(f"ds_read_b128 {vr(xf(kk,0))}, v{xa} offset:{s*8192}")
            lst.append(f"ds_read_b128 {vr(xf(kk,1))}, v{xa} offset:{s*8192+2048}")
            for blk in range(3):
                for hf in range(2):
                    lst.append(f"ds_read_b64_tr_b16 {vr(wf(kk,blk)+2*hf,2)}, v9 offset:{blk*8192 + (32*kk+4*hf)*128}")
            return lst[:4] if part == 0 else lst[4:] if part == 1 else lst
        for ln in reads(0, 2): a(ln)
        for ln in reads(1, 0): a(ln)
        a("s_waitcnt lgkmcnt(4)")
        for ln in reads(1, 1): a(ln)
        if s == 6:
            a(f"s_lshl_b32 s41, s27, 8\ns_add_u32 s41, s41, {STB}")
            a("v_lshlrev_b32 v10, 3, v2\nv_add_u32 v10, s41, v10")
            a("v_lshlrev_b32 v11, 5, v3\nv_add_u32 v11, s41, v11")
            for rt in range(2):
                a(f"ds_read_b64 {vr(SQ+2*rt,2)}, v10 offset:{rt*128}")
                a(f"ds_read_b128 {vr(SV+8*rt)}, v11 offset:{rt*128}")
                a(f"ds_read_b128 {vr(SV+8*rt+4)}, v11 offset:{rt*128 + 16}")
        def compute(kk):
            for blk in range(2):
                for rt in range(2):
                    a(f"v_mfma_f32_16x16x32_bf16 {vr(acc(blk,rt))}, {vr(wf(kk,blk))}, {vr(xf(kk,rt))}, {vr(acc(blk,rt))}")
                a(f"v_mfma_f32_16x16x32_bf16 {vr(acc(blk,2))}, {vr(wf(kk,blk))}, {vr(ONES)}, {vr(acc(blk,2))}")
            for rt in range(2):
                a(f"v_mfma_f32_16x16x32_bf16 {vr(acc(2,rt))}, {vr(xf(kk,rt))}, {vr(wf(kk,2))}, {vr(acc(2,rt))}")
            a(f"v_mfma_f32_16x16x32_bf16 {vr(acc(2,2))}, {vr(ONES)}, {vr(wf(kk,2))}, {vr(acc(2,2))}")
        compute(0)
        a("s_waitcnt lgkmcnt(0)" if s < 6 else "s_waitcnt lgkmcnt(6)")
        compute(1)
    stamp(a, 5)
    a("s_waitcnt lgkmcnt(0)")
    a(f"v_mov_b32 v17, {f32(QSCALE)}")
    for rt in range(2):
        a(f"v_mul_f32 v{18+2*rt}, v17, v{SQ+2*rt}\nv_mul_f32 v{19+2*rt}, v17, v{SQ+2*rt+1}")
    for blk in range(2):
        for rt in range(2):
            A_, B_ = (18 + 2*rt, 19 + 2*rt) if blk == 0 else (SQ + 2*rt, SQ + 2*rt + 1)
            t = 24 + (blk*2 + rt)*4
            for r in range(4):
                a(f"v_mul_f32 v{t+r}, v{acc(blk,2)+r}, v{B_}")
            for r in range(4):
                a(f"v_fma_f32 v{t+r}, v{acc(blk,rt)+r}, v{A_}, v{t+r}")
            d = 40 + (blk*2 + rt)*2
            a(f"v_cvt_pk_bf16_f32 v{d}, v{t}, v{t+1}\nv_cvt_pk_bf16_f32 v{d+1}, v{t+2}, v{t+3}")
            a(f"buffer_store_dwordx2 {vr(d,2)}, v{QKA}, s[20:23], s{42+blk} offen offset:{rt*1024}")
    for rt in range(2):
        t = 24 + rt*4
        for r in range(4):
            a(f"v_mul_f32 v{t+r}, v{acc(2,2)+r}, v{SV+8*rt+2*r+1}")
        for r in range(4):
            a(f"v_fma_f32 v{t+r}, v{acc(2,rt)+r}, v{SV+8*rt+2*r}, v{t+r}")
        a(f"v_cvt_pk_bf16_f32 v{48+2*rt}, v{t}, v{t+1}\nv_cvt_pk_bf16_f32 v{49+2*rt}, v{t+2}, v{t+3}")
    a(f"buffer_store_dwordx4 {vr(48)}, v{VA}, s[20:23], s44 offen")
    a("v_mov_b32 v16, 0")
    a("v_mov_b32 v17, 0")
    a("s_mov_b64 exec, s[46:47]")
    a("s_cbranch_execz K1_NOPADQK")
    for blk in range(2):
        for rt in range(2):
            a(f"buffer_store_dwordx2 v[16:17], v{QKA}, s[20:23], s{42+blk} offen offset:{rt*1024+8}")
    a("K1_NOPADQK:")
    a("s_mov_b64 exec, s[48:49]")
    a("s_cbranch_execz K1_NOPADV")
    a(f"buffer_store_dwordx4 {vr(ONES)}, v{VA}, s[20:23], s44 offen offset:16")
    a("K1_NOPADV:")
    a("s_mov_b64 exec, -1")
    if STAMPS:
        stamp(a, 6)
        a("s_waitcnt vmcnt(0)")
        stamp(a, 7)
        stamp_flush(a, 8, 0, label="K1a")
    a("s_endpgm")

    a("K1_RELAYOUT:")
    a("s_lshl_b32 s27, s24, 3\ns_add_u32 s27, s27, s26")
    a("v_lshrrev_b32 v9, 3, v1\nv_and_b32 v10, 7, v1\nv_lshlrev_b32 v10, 4, v10")
    a("s_lshl_b32 s40, s26, 14")
    for rnd in range(2):
        T, KB, CB = 50 + 4*rnd, 51 + 4*rnd, 52 + 4*rnd
        L = f"K1R{rnd}"
        a(f"s_add_u32 s28, s27, {256*rnd}")
        a(f"s_mov_b32 s{T}, 3")
        a(f"s_cmp_ge_u32 s28, 441\ns_cbranch_scc1 {L}_SKIP")
        a(f"s_cmp_ge_u32 s28, 245\ns_cbranch_scc1 {L}_W2")
        a(f"s_cmp_ge_u32 s28, 49\ns_cbranch_scc1 {L}_W1")
        a(f"s_mov_b32 s{T}, 0")
        a(f"s_mul_i32 s{KB}, s28, 9363\ns_lshr_b32 s{KB}, s{KB}, 16")
        a(f"s_mul_i32 s29, s{KB}, 7\ns_sub_u32 s{CB}, s28, s29")
        a("s_mov_b32 s44, s30\ns_mov_b32 s45, s31\ns_mov_b32 s46, %d\ns_movk_i32 s48, 896" % (448*896))
        a(f"s_branch {L}_GO")
        a(f"{L}_W1:")
        a(f"s_mov_b32 s{T}, 1")
        a("s_sub_u32 s28, s28, 49")
        a(f"s_mul_i32 s{KB}, s28, 2341\ns_lshr_b32 s{KB}, s{KB}, 16")
        a(f"s_mul_i32 s29, s{KB}, 28\ns_sub_u32 s{CB}, s28, s29")
        a("s_mov_b32 s44, s32\ns_mov_b32 s45, s33\ns_mov_b32 s46, %d\ns_movk_i32 s48, 3584" % (448*3584))
        a(f"s_branch {L}_GO")
        a(f"{L}_W2:")
        a(f"s_mov_b32 s{T}, 2")
        a("s_sub_u32 s28, s28, 245")
        a(f"s_mul_i32 s{KB}, s28, 9363\ns_lshr_b32 s{KB}, s{KB}, 16")
        a(f"s_mul_i32 s29, s{KB}, 7\ns_sub_u32 s{CB}, s28, s29")
        a("s_mov_b32 s44, s34\ns_mov_b32 s45, s35\ns_mov_b32 s46, %d\ns_movk_i32 s48, 896" % (1792*896))
        a(f"{L}_GO:")
        a("s_and_b32 s45, s45, 0xffff\ns_mov_b32 s47, 0x00020000")
        a("v_mul_lo_u32 v11, v9, s48\nv_add_u32 v11, v11, v10")
        a(f"s_mul_i32 s28, s{KB}, s48\ns_lshl_b32 s28, s28, 6\ns_lshl_b32 s29, s{CB}, 7\ns_add_u32 s28, s28, s29")
        a("s_lshl_b32 s49, s48, 3")
        for i in range(8):
            a(f"s_add_u32 m0, s40, {rnd*8192 + i*1024}")
            a("s_nop 0")
            a("buffer_load_dwordx4 v11, s[44:47], s28 offen lds")
            if i < 7: a("s_add_u32 s28, s28, s49")
        a(f"{L}_SKIP:")
    stamp(a, 1)
    a("s_waitcnt vmcnt(0)")
    stamp(a, 2)
    a("v_lshrrev_b32 v9, 2, v2\nv_and_b32 v10, 3, v2")
    a("v_lshlrev_b32 v12, 4, v1")
    for rnd in range(2):
        T, KB, CB = 50 + 4*rnd, 51 + 4*rnd, 52 + 4*rnd
        L = f"K1P{rnd}"
        a(f"s_cmp_eq_u32 s{T}, 3\ns_cbranch_scc1 {L}_DONE")
        a(f"s_add_u32 s41, s40, {rnd*8192}")
        a(f"s_cmp_eq_u32 s{T}, 1\ns_cbranch_scc1 {L}_W1")
        a(f"s_cmp_eq_u32 s{T}, 2\ns_cbranch_scc1 {L}_W2")
        for typ in (0, 2):
            if typ == 2: a(f"{L}_W2:")
            sh = 3 if typ == 0 else 2
            a(f"v_lshlrev_b32 v11, {sh}, v3\nv_add_u32 v11, v11, v9\nv_lshlrev_b32 v11, 7, v11")
            a("v_lshlrev_b32 v13, 5, v10\nv_add_u32 v11, v11, v13\nv_add_u32 v11, s41, v11")
            nks = 14 if typ == 0 else 56
            base = WS_WO if typ == 0 else WS_W2
            a(f"s_mul_i32 s42, s{CB}, {nks}\ns_lshl_b32 s43, s{KB}, 1\ns_add_u32 s42, s42, s43\ns_lshl_b32 s42, s42, 12\ns_add_u32 s42, s42, {base}")
            for kk in range(2):
                for c in range(4):
                    d = 16 + (kk*4 + c)*4
                    for hf in range(2):
                        rowimm = (32*kk + (4*hf if typ == 0 else 16*hf))
                        a(f"ds_read_b64_tr_b16 {vr(d+2*hf,2)}, v11 offset:{rowimm*128 + 8*c}")
            a("s_waitcnt lgkmcnt(0)")
            for kk in range(2):
                a(f"s_add_u32 s43, s42, {kk*4096}")
                for c in range(4):
                    d = 16 + (kk*4 + c)*4
                    a(f"buffer_store_dwordx4 {vr(d)}, v12, s[20:23], s43 offen offset:{c*1024}")
            a(f"s_branch {L}_DONE")
        a(f"{L}_W1:")
        a("v_lshlrev_b32 v11, 4, v3\nv_add_u32 v11, v11, v9\nv_lshlrev_b32 v11, 7, v11")
        a("v_lshlrev_b32 v13, 3, v10\nv_add_u32 v11, v11, v13\nv_add_u32 v11, s41, v11")
        for aa in range(2):
            for ct4 in range(4):
                d = 16 + (aa*4 + ct4)*4
                for hf in range(2):
                    a(f"ds_read_b64_tr_b16 {vr(d+2*hf,2)}, v11 offset:{(8*aa+4*hf)*128 + 32*ct4}")
        a(f"s_mul_i32 s42, s{CB}, 28\ns_lshl_b32 s43, s{KB}, 1\ns_add_u32 s42, s42, s43\ns_lshl_b32 s42, s42, 11\ns_add_u32 s42, s42, {WS_W1}")
        a("s_waitcnt lgkmcnt(0)")
        for aa in range(2):
            for ct4 in range(4):
                d = 16 + (aa*4 + ct4)*4
                off = (((ct4 >> 1)*14 + aa)*2 + (ct4 & 1))*1024
                a(f"s_add_u32 s43, s42, {off}")
                a(f"buffer_store_dwordx4 {vr(d)}, v12, s[20:23], s43 offen")
        a(f"{L}_DONE:")
    if STAMPS:
        stamp(a, 3); stamp(a, 4); stamp(a, 5); stamp(a, 6)
        a("s_waitcnt vmcnt(0)")
        stamp(a, 7)
        stamp_flush(a, 8, 0, label="K1b")
    a("K1_END:\ns_endpgm")


WS_ST = 0x1600000
NEG = -1.0e30

def prologue_common(a, end_label, loads):
    a(f"s_cmp_ge_u32 s2, 256\ns_cbranch_scc1 {end_label}")
    for (dst, off) in loads:
        a(f"s_load_dwordx2 s[{dst}:{dst+1}], s[0:1], {off}")
    decode_gj(a, 24, 25, 26)
    a("v_and_b32 v1, 63, v0")
    a("v_lshrrev_b32 v9, 6, v0")
    a("v_and_b32 v2, 15, v1")
    a("v_readfirstlane_b32 s26, v9")
    a("v_lshrrev_b32 v3, 4, v1")
    a("v_lshlrev_b32 v4, 4, v1")

def emit_k2(a):
    a(".globl k2_kernel\n.p2align 8\n.type k2_kernel,@function\nk2_kernel:")
    prologue_common(a, "K2_END", [(8, 80)])
    a("s_waitcnt lgkmcnt(0)")
    srd(a, 20, 8, WS_SIZE)
    a("s_lshr_b32 s27, s26, 2")
    a("s_and_b32 s28, s26, 3")
    a("s_lshl_b32 s29, s25, 1\ns_add_u32 s29, s29, s27")
    a("s_lshl_b32 s30, s24, 2\ns_add_u32 s30, s30, s28")
    a("s_lshl_b32 s31, s29, 17")
    QF = 8
    a(f"s_lshl_b32 s32, s30, 10\ns_add_u32 s32, s32, s31\ns_add_u32 s32, s32, {WS_Q}")
    a(f"buffer_load_dwordx4 {vr(QF)}, v4, s[20:23], s32 offen")
    a("s_mul_i32 s33, s27, 40960")
    a("s_mul_i32 s34, s28, 5")
    a("s_lshl_b32 s35, s24, 2\ns_sub_i32 s35, s35, 16\ns_add_i32 s35, s35, s34")
    a("s_lshl_b32 s36, s34, 10\ns_add_u32 s36, s36, s33")
    for m in range(5):
        a(f"s_add_i32 s37, s35, {m}\ns_max_i32 s37, s37, 0\ns_lshl_b32 s37, s37, 10\ns_add_u32 s37, s37, s31\ns_add_u32 s37, s37, {WS_K}")
        a(f"s_add_u32 m0, s36, {m*1024}")
        a("s_nop 0")
        a("buffer_load_dwordx4 v4, s[20:23], s37 offen lds")
    a("s_lshl_b32 s35, s24, 2\ns_sub_i32 s35, s35, 16\ns_add_i32 s35, s35, s34")
    for m in range(5):
        a(f"s_add_i32 s37, s35, {m}\ns_and_b32 s38, s37, 1\ns_max_i32 s37, s37, s38\ns_lshl_b32 s37, s37, 10\ns_add_u32 s37, s37, s31\ns_add_u32 s37, s37, {WS_V}")
        a(f"s_add_u32 m0, s36, {20480 + m*1024}")
        a("s_nop 0")
        a("buffer_load_dwordx4 v4, s[20:23], s37 offen lds")
    MK = 12
    a(f"v_mov_b32 v28, {f32(NEG)}\nv_mov_b32 v29, 0")
    a("v_lshlrev_b32 v5, 2, v3")
    a("s_and_b32 s38, s28, 1")
    a("s_cmp_eq_u32 s38, 0\ns_cselect_b64 s[40:41], -1, 0")
    for r in range(4):
        a(f"v_add_u32 v6, {r}, v5")
        a("v_cmp_gt_u32 vcc, v6, v2")
        a("s_nop 1")
        a("v_cndmask_b32 v30, v28, v29, vcc")
        a("v_cndmask_b32 v31, v29, v28, vcc")
        a(f"v_cndmask_b32 v{MK+r}, v28, v30, s[40:41]")
        a(f"v_cndmask_b32 v{MK+4+r}, v30, v29, s[40:41]")
        a(f"v_cndmask_b32 v{MK+8+r}, v29, v31, s[40:41]")
        a(f"v_cndmask_b32 v{MK+12+r}, v31, v28, s[40:41]")
    a("s_and_b32 s38, s28, 2")
    a("s_lshl_b32 s39, s38, 10\ns_add_u32 s39, s39, s33")
    a("v_add_u32 v5, s39, v4")
    a("s_add_u32 s39, s39, 20480")
    a("v_add_u32 v6, s39, v4")
    a("s_mul_i32 s38, s29, 7")
    OA = 30
    for dt in range(2):
        a(f"v_add_u32 v28, s38, v3\nv_add_u32 v28, {4*dt}, v28")
        a("v_lshrrev_b32 v29, 3, v28\nv_lshlrev_b32 v29, 10, v29")
        a("v_bfe_u32 v7, v28, 1, 2\nv_lshlrev_b32 v7, 8, v7\nv_add_u32 v29, v29, v7")
        a("v_and_b32 v28, 1, v28\nv_lshlrev_b32 v28, 3, v28\nv_add_u32 v29, v29, v28")
        a(f"v_lshlrev_b32 v28, 4, v2\nv_add_u32 v{OA+dt}, v29, v28")
    a(f"s_mul_i32 s42, s30, 14336\ns_add_u32 s42, s42, {WS_O}")
    a("v_or_b32 v7, 48, v2\nv_lshlrev_b32 v7, 2, v7")
    S = 32
    KF = 104
    VF = 120
    PF = 136
    OACC = 144
    a("s_waitcnt vmcnt(0)")
    a("s_barrier")
    def cm(p):
        return {0: vr(MK), 1: vr(MK+4), 16: vr(MK+8), 17: vr(MK+12)}.get(p, "0")
    for p in range(3):
        a(f"ds_read_b128 {vr(KF+4*(p%4))}, v5 offset:{p*1024}")
    for p in range(18):
        if p + 3 < 18:
            a(f"ds_read_b128 {vr(KF+4*((p+3)%4))}, v5 offset:{(p+3)*1024}")
        a(f"s_waitcnt lgkmcnt({min(3, 17-p)})")
        a(f"v_mfma_f32_16x16x32_bf16 {vr(S+4*p)}, {vr(KF+4*(p%4))}, {vr(QF)}, {cm(p)}")
    for n in range(4):
        a(f"ds_read_b128 {vr(VF+4*n)}, v6 offset:{n*1024}")
    a("s_cmp_ge_u32 s30, 16\ns_cbranch_scc1 K2_NOFIX")
    a("s_and_b32 s38, s30, 0xfffffffe\ns_sub_u32 s38, 16, s38")
    a("s_nop 7")
    for p in range(16):
        a(f"s_cmp_le_u32 s38, {p}\ns_cbranch_scc1 K2_NOFIX")
        for r in range(4):
            a(f"v_mov_b32 v{S+4*p+r}, {f32(NEG)}")
    a("K2_NOFIX:")
    a("s_nop 7")
    M = 28
    a(f"v_max3_f32 v{M}, v{S}, v{S+1}, v{S+2}")
    a(f"v_max3_f32 v29, v{S+3}, v{S+4}, v{S+5}")
    idx = 6
    tog = 0
    while idx < 72:
        dst = M if tog == 0 else 29
        a(f"v_max3_f32 v{dst}, v{dst}, v{S+idx}, v{S+idx+1}")
        idx += 2; tog ^= 1
    a(f"v_max_f32 v{M}, v{M}, v29")
    allreduce_g(a, M, 29, "v_max_f32")
    for i in range(8): a(f"v_mov_b32 v{OACC+i}, 0")
    for pp in range(9):
        pf = PF + 4*(pp % 2)
        for e in range(8):
            a(f"v_sub_f32 v{S+8*pp+e}, v{S+8*pp+e}, v{M}")
        for e in range(8):
            a(f"v_exp_f32 v{S+8*pp+e}, v{S+8*pp+e}")
        a("s_nop 0")
        for d in range(4):
            a(f"v_cvt_pk_bf16_f32 v{pf+d}, v{S+8*pp+2*d}, v{S+8*pp+2*d+1}")
        n0 = 2*pp
        a(f"s_waitcnt lgkmcnt({2 if pp < 8 else 0})")
        a("s_nop 0")
        for dt in range(2):
            a(f"v_mfma_f32_16x16x32_bf16 {vr(OACC+4*dt)}, {vr(VF+4*((n0+dt)%4))}, {vr(pf)}, {vr(OACC+4*dt)}")
        for dt in range(2):
            n = n0 + 4 + dt
            if n < 18:
                a(f"ds_read_b128 {vr(VF+4*(n%4))}, v6 offset:{n*1024}")
    a("s_nop 7")
    a(f"ds_bpermute_b32 v28, v7, v{OACC+4}")
    a("s_waitcnt lgkmcnt(0)")
    a("v_rcp_f32 v28, v28")
    a("s_nop 0")
    for i in range(8):
        a(f"v_mul_f32 v{OACC+i}, v{OACC+i}, v28")
    for dt in range(2):
        a(f"v_cvt_pk_bf16_f32 v{S+2*dt}, v{OACC+4*dt}, v{OACC+4*dt+1}\nv_cvt_pk_bf16_f32 v{S+2*dt+1}, v{OACC+4*dt+2}, v{OACC+4*dt+3}")
    a(f"buffer_store_dwordx2 {vr(S,2)}, v{OA}, s[20:23], s42 offen")
    a("s_mov_b32 exec_hi, 0x0000ffff")
    a(f"buffer_store_dwordx2 {vr(S+2,2)}, v{OA+1}, s[20:23], s42 offen")
    a("K2_END:\ns_endpgm")

def emit_k3(a):
    a(".globl k3_kernel\n.p2align 8\n.type k3_kernel,@function\nk3_kernel:")
    prologue_common(a, "K3_END", [(8, 80), (4, 0)])
    a("s_cmp_eq_u32 s25, 7\ns_cbranch_scc1 K3_END")
    a("s_waitcnt lgkmcnt(0)")
    srd(a, 20, 8, WS_SIZE)
    srd(a, 12, 4, 2048*896)
    a("s_lshr_b32 s27, s26, 1")
    a("s_and_b32 s28, s26, 1")
    a("s_lshl_b32 s30, s24, 2\ns_add_u32 s30, s30, s27")
    a(f"s_mul_i32 s31, s25, 57344\ns_mul_i32 s32, s26, 7168\ns_add_u32 s31, s31, s32\ns_add_u32 s31, s31, {WS_WO}")
    for m in range(7):
        a(f"s_add_u32 m0, s32, {m*1024}")
        a(f"s_add_u32 s33, s31, {m*1024}")
        a("buffer_load_dwordx4 v4, s[20:23], s33 offen lds")
    OF = 8
    a(f"s_mul_i32 s33, s30, 14336\ns_add_u32 s33, s33, s32\ns_mul_i32 s34, s27, 14336\ns_mul_i32 s33, s30, 14336\ns_mul_i32 s34, s28, 7168\ns_add_u32 s33, s33, s34\ns_add_u32 s33, s33, {WS_O}")
    for i in range(7):
        a(f"s_add_u32 s34, s33, {i*1024}")
        a(f"buffer_load_dwordx4 {vr(OF+4*i)}, v4, s[20:23], s34 offen")
    XR = 36
    a("v_mul_u32_u24 v5, 896, v2\nv_lshlrev_b32 v6, 5, v3\nv_add_u32 v5, v5, v6")
    a("s_mul_i32 s34, s30, 14336\ns_lshl_b32 s35, s25, 7\ns_add_u32 s34, s34, s35\ns_lshl_b32 s35, s28, 4\ns_add_u32 s34, s34, s35")
    a(f"buffer_load_dwordx4 {vr(XR)}, v5, s[12:15], s34 offen")
    ACC = 40
    WFR = 56
    for i in range(16): a(f"v_mov_b32 v{ACC+i}, 0")
    a("s_mul_i32 s34, s28, 28672")
    a("v_add_u32 v6, s34, v4")
    a("s_waitcnt vmcnt(0)")
    a("s_barrier")
    seq = [(i, c) for i in range(7) for c in range(4)]
    for n in range(3):
        a(f"ds_read_b128 {vr(WFR+4*(n%4))}, v6 offset:{n*1024}")
    for n, (i, c) in enumerate(seq):
        if n + 3 < 28:
            a(f"ds_read_b128 {vr(WFR+4*((n+3)%4))}, v6 offset:{(n+3)*1024}")
        a(f"s_waitcnt lgkmcnt({min(3, 27-n)})")
        a(f"v_mfma_f32_16x16x32_bf16 {vr(ACC+4*c)}, {vr(WFR+4*(n%4))}, {vr(OF+4*i)}, {vr(ACC+4*c)}")
    a("s_lshl_b32 s34, s26, 11\ns_add_u32 s34, s34, 57344")
    a("v_add_u32 v6, s34, v4")
    a("s_xor_b32 s34, s34, 2048")
    a("v_add_u32 v7, s34, v4")
    a("s_nop 7")
    a("s_cmp_eq_u32 s28, 1\ns_cbranch_scc1 K3_KH1")
    a(f"ds_write_b128 v6, {vr(ACC+8)}\nds_write_b128 v6, {vr(ACC+12)} offset:1024")
    a("s_branch K3_X")
    a("K3_KH1:")
    a(f"ds_write_b128 v6, {vr(ACC)}\nds_write_b128 v6, {vr(ACC+4)} offset:1024")
    for i in range(8): a(f"v_mov_b32 v{ACC+i}, v{ACC+8+i}")
    a("K3_X:")
    a("s_waitcnt lgkmcnt(0)")
    a("s_barrier")
    a(f"ds_read_b128 {vr(56)}, v7\nds_read_b128 {vr(60)}, v7 offset:1024")
    a("s_waitcnt lgkmcnt(0)")
    for i in range(8):
        a(f"v_add_f32 v{ACC+i}, v{ACC+i}, v{56+i}")
    for d in range(4):
        a(f"v_lshlrev_b32 v56, 16, v{XR+d}\nv_and_b32 v57, 0xffff0000, v{XR+d}")
        a(f"v_add_f32 v{ACC+2*d}, v{ACC+2*d}, v56\nv_add_f32 v{ACC+2*d+1}, v{ACC+2*d+1}, v57")
    for d in range(4):
        a(f"v_cvt_pk_bf16_f32 v{60+d}, v{ACC+2*d}, v{ACC+2*d+1}")
    a(f"s_mul_i32 s34, s30, 14336\ns_lshl_b32 s35, s25, 11\ns_add_u32 s34, s34, s35\ns_lshl_b32 s35, s28, 10\ns_add_u32 s34, s34, s35\ns_add_u32 s34, s34, {WS_H}")
    a(f"buffer_store_dwordx4 {vr(60)}, v4, s[20:23], s34 offen")
    a("v_mov_b32 v56, 0\nv_mov_b32 v57, 0\nv_mov_b32 v58, 0x3f803f80")
    for d in range(4):
        a(f"v_dot2c_f32_bf16 v56, v{60+d}, v58")
        a(f"v_dot2c_f32_bf16 v57, v{60+d}, v{60+d}")
    a("s_nop 2")
    allreduce_g(a, 56, 59)
    allreduce_g(a, 57, 59)
    a(f"s_mul_i32 s34, s30, 1792\ns_lshl_b32 s35, s25, 8\ns_add_u32 s34, s34, s35\ns_lshl_b32 s35, s28, 7\ns_add_u32 s34, s34, s35\ns_add_u32 s34, s34, {WS_ST}")
    a("v_lshlrev_b32 v5, 3, v2")
    a("s_mov_b64 exec, 0xffff")
    a("buffer_store_dwordx2 v[56:57], v5, s[20:23], s34 offen")
    a("K3_END:\ns_endpgm")

def emit_k4(a):
    a(".globl k4_kernel\n.p2align 8\n.type k4_kernel,@function\nk4_kernel:")
    prologue_common(a, "K4_END", [(8, 80), (4, 40)])
    a("s_cmp_eq_u32 s25, 7\ns_cbranch_scc1 K4_END")
    a("s_waitcnt lgkmcnt(0)")
    srd(a, 20, 8, WS_SIZE)
    srd(a, 12, 4, 3584)
    a(f"s_mul_i32 s31, s24, 57344\ns_mul_i32 s32, s26, 7168\ns_add_u32 s31, s31, s32\ns_add_u32 s31, s31, {WS_H}")
    for m in range(7):
        a(f"s_add_u32 m0, s32, {m*1024}")
        a(f"s_add_u32 s33, s31, {m*1024}")
        a("buffer_load_dwordx4 v4, s[20:23], s33 offen lds")
    a("s_and_b32 s27, s26, 3")
    a(f"s_lshl_b32 s33, s24, 2\ns_add_u32 s33, s33, s27\ns_mul_i32 s33, s33, 1792\ns_add_u32 s33, s33, {WS_ST}")
    a("v_lshlrev_b32 v5, 7, v3\nv_lshlrev_b32 v6, 3, v2\nv_add_u32 v5, v5, v6")
    SP = 8
    for q in range(3):
        a(f"buffer_load_dwordx2 {vr(SP+2*q,2)}, v5, s[20:23], s33 offen offset:{q*512}")
    a(f"v_mov_b32 v{SP+6}, 0\nv_mov_b32 v{SP+7}, 0")
    a("s_mov_b32 exec_hi, 0")
    a(f"buffer_load_dwordx2 {vr(SP+6,2)}, v5, s[20:23], s33 offen offset:1536")
    a("s_mov_b32 exec_hi, -1")
    B1 = 16
    a("s_lshl_b32 s33, s25, 9\ns_lshl_b32 s34, s26, 6\ns_add_u32 s33, s33, s34")
    a("v_lshlrev_b32 v6, 3, v3")
    for ct in range(2):
        a(f"buffer_load_dwordx2 {vr(B1+2*ct,2)}, v6, s[12:15], s33 offen offset:{32*ct}")
    WF = 128
    a(f"s_lshl_b32 s33, s25, 3\ns_add_u32 s33, s33, s26\ns_mul_i32 s33, s33, 28672\ns_add_u32 s33, s33, {WS_W1}")
    for n in range(28):
        a(f"s_add_u32 s34, s33, {n*1024}")
        a(f"buffer_load_dwordx4 {vr(WF+4*n)}, v4, s[20:23], s34 offen")
    ONES = 20
    ACC = 24
    CS = 56
    HF = 64
    for i in range(4): a(f"v_mov_b32 v{ONES+i}, 0x3f803f80")
    for i in range(40): a(f"v_mov_b32 v{ACC+i}, 0")
    a("s_waitcnt vmcnt(30)")
    for k in range(2):
        a(f"v_add_f32 v{SP+k}, v{SP+k}, v{SP+2+k}\nv_add_f32 v{SP+4+k}, v{SP+4+k}, v{SP+6+k}\nv_add_f32 v{SP+k}, v{SP+k}, v{SP+4+k}")
    allreduce_g(a, SP, 96)
    allreduce_g(a, SP+1, 96)
    a(f"v_mul_f32 v96, {f32(1.0/448)}, v{SP}")
    a(f"v_mul_f32 v97, {f32(1.0/448)}, v{SP+1}")
    a("v_fma_f32 v97, -v96, v96, v97\nv_max_f32 v97, 0, v97")
    a(f"v_add_f32 v97, {f32(1e-5)}, v97\nv_rsq_f32 v98, v97\ns_nop 0\nv_mul_f32 v99, v96, v98\nv_sub_f32 v99, 0, v99")
    STB = 57344
    a(f"s_lshl_b32 s33, s27, 7\ns_add_u32 s33, s33, {STB}\nv_lshlrev_b32 v5, 3, v2\nv_add_u32 v5, s33, v5")
    a("ds_write_b64 v5, v[98:99]")
    a("s_waitcnt lgkmcnt(0)")
    a("s_barrier")
    def hread(n):
        ks, rt = n // 4, n % 4
        a(f"ds_read_b128 {vr(HF+4*(n%8))}, v4 offset:{(rt*14+ks)*1024}")
    for n in range(4): hread(n)
    for ks in range(14):
        if ks + 1 < 14:
            for rt in range(4): hread((ks+1)*4 + rt)
        a(f"s_waitcnt vmcnt({26-2*ks}) lgkmcnt({4 if ks+1 < 14 else 0})")
        for ct in range(2):
            wf = WF + 4*(ks*2+ct)
            for rt in range(4):
                a(f"v_mfma_f32_16x16x32_bf16 {vr(ACC+(rt*2+ct)*4)}, {vr(wf)}, {vr(HF+4*((ks*4+rt)%8))}, {vr(ACC+(rt*2+ct)*4)}")
            a(f"v_mfma_f32_16x16x32_bf16 {vr(CS+4*ct)}, {vr(wf)}, {vr(ONES)}, {vr(CS+4*ct)}")
    a(f"v_lshlrev_b32 v5, 3, v2\nv_add_u32 v5, {STB}, v5")
    ST = 96
    for rt in range(4):
        a(f"ds_read_b64 {vr(ST+2*rt,2)}, v5 offset:{rt*128}")
    B1F = 104
    for ct in range(2):
        for d in range(2):
            a(f"v_lshlrev_b32 v{B1F+4*ct+2*d}, 16, v{B1+2*ct+d}\nv_and_b32 v{B1F+4*ct+2*d+1}, 0xffff0000, v{B1+2*ct+d}")
    a(f"s_lshl_b32 s33, s24, 2\ns_mul_i32 s33, s33, 57344\ns_lshl_b32 s34, s25, 13\ns_add_u32 s33, s33, s34\ns_lshl_b32 s34, s26, 10\ns_add_u32 s33, s33, s34\ns_add_u32 s33, s33, {WS_HID}")
    a("s_waitcnt lgkmcnt(0)")
    a("s_nop 4")
    for rt in range(4):
        T0 = 64 + 8*rt
        for ct in range(2):
            for r in range(4):
                a(f"v_fma_f32 v{T0+4*ct+r}, v{CS+4*ct+r}, v{ST+2*rt+1}, v{B1F+4*ct+r}")
            for r in range(4):
                a(f"v_fma_f32 v{T0+4*ct+r}, v{ACC+(rt*2+ct)*4+r}, v{ST+2*rt}, v{T0+4*ct+r}")
            for r in range(4):
                a(f"v_max_f32 v{T0+4*ct+r}, 0, v{T0+4*ct+r}")
            for r in range(4):
                a(f"v_mul_f32 v{T0+4*ct+r}, v{T0+4*ct+r}, v{T0+4*ct+r}")
        for d in range(4):
            a(f"v_cvt_pk_bf16_f32 v{112+4*rt+d}, v{T0+2*d}, v{T0+2*d+1}")
        a(f"s_add_u32 s34, s33, {rt*57344}")
        a(f"buffer_store_dwordx4 {vr(112+4*rt)}, v4, s[20:23], s34 offen")
    a("K4_END:\ns_endpgm")

def emit_k5(a):
    a(".globl k5_kernel\n.p2align 8\n.type k5_kernel,@function\nk5_kernel:")
    prologue_common(a, "K5_END", [(8, 80), (4, 56), (6, 64)])
    a("s_cmp_eq_u32 s25, 7\ns_cbranch_scc1 K5_END")
    a("s_waitcnt lgkmcnt(0)")
    srd(a, 20, 8, WS_SIZE)
    srd(a, 12, 4, 896)
    srd(a, 16, 6, 2048*896)
    WF = 128
    HF = 32
    a(f"s_lshl_b32 s31, s24, 2\ns_mul_i32 s31, s31, 57344\ns_mul_i32 s32, s26, 7168\ns_add_u32 s31, s31, s32\ns_add_u32 s31, s31, {WS_HID}")
    a(f"s_mul_i32 s33, s25, 229376\ns_mul_i32 s34, s26, 28672\ns_add_u32 s33, s33, s34\ns_add_u32 s33, s33, {WS_W2}")
    RING = 21
    def hload(n):
        rt, i = n // 7, n % 7
        a(f"s_add_u32 s34, s31, {rt*57344 + i*1024}")
        a(f"buffer_load_dwordx4 {vr(HF+4*(n%RING))}, v4, s[20:23], s34 offen")
    for i in range(7):
        for c in range(4):
            a(f"s_add_u32 s34, s33, {(i*4+c)*1024}")
            a(f"buffer_load_dwordx4 {vr(WF+4*(i*4+c))}, v4, s[20:23], s34 offen")
        hload(i)
    for n in range(7, RING): hload(n)
    a("s_lshr_b32 s27, s26, 1\ns_and_b32 s28, s26, 1")
    a("s_lshl_b32 s30, s24, 2\ns_add_u32 s30, s30, s27")
    HR, B2 = 8, 12
    a(f"s_mul_i32 s34, s30, 14336\ns_lshl_b32 s35, s25, 11\ns_add_u32 s34, s34, s35\ns_lshl_b32 s35, s28, 10\ns_add_u32 s34, s34, s35\ns_add_u32 s34, s34, {WS_H}")
    a(f"buffer_load_dwordx4 {vr(HR)}, v4, s[20:23], s34 offen")
    a("v_lshlrev_b32 v5, 5, v3")
    a("s_lshl_b32 s34, s25, 7\ns_lshl_b32 s35, s28, 4\ns_add_u32 s36, s34, s35")
    a(f"buffer_load_dwordx4 {vr(B2)}, v5, s[12:15], s36 offen")
    a("v_mul_u32_u24 v6, 896, v2\nv_add_u32 v6, v6, v5")
    a("s_mul_i32 s34, s30, 14336\ns_add_u32 s36, s36, s34")
    ACC = 16
    a("s_lshl_b32 s37, s26, 12")
    a("v_add_u32 v7, s37, v4")
    issued = 28 + RING + 2
    order = []
    for i in range(7):
        order += [("w", i)]*4 + [("h", i)]
    order += [("h", n) for n in range(7, RING)] + [("x", 0), ("x", 1)]
    nload = RING
    for rt in range(4):
        for i in range(16): a(f"v_mov_b32 v{ACC+i}, 0")
        for i in range(7):
            n = rt*7 + i
            pos = max(k for k, e in enumerate(order) if e == ("h", n) or (e == ("w", i)))
            a(f"s_waitcnt vmcnt({len(order) - 1 - pos})")
            for c in range(4):
                a(f"v_mfma_f32_16x16x32_bf16 {vr(ACC+4*c)}, {vr(WF+4*(i*4+c))}, {vr(HF+4*(n%RING))}, {vr(ACC+4*c)}")
            if nload < 28:
                hload(nload); order.append(("h", nload)); nload += 1
        a("s_nop 7")
        for c in range(4):
            a(f"ds_write_b128 v7, {vr(ACC+4*c)} offset:{rt*32768 + c*1024 if rt < 2 else 0}" if rt < 2 else
              f"ds_write_b128 v7, {vr(ACC+4*c)} offset:{(rt-2)*32768 + c*1024}")
        if rt == 1:
            a("v_add_u32 v7, 65536, v7")
    a("s_waitcnt lgkmcnt(0)")
    a("s_barrier")
    a("s_lshl_b32 s37, s27, 15\ns_lshl_b32 s38, s28, 11\ns_add_u32 s37, s37, s38")
    a("v_add_u32 v7, s37, v4")
    R = 32
    for wv in range(8):
        a(f"ds_read_b128 {vr(R+8*wv)}, v7 offset:{wv*4096}\nds_read_b128 {vr(R+8*wv+4)}, v7 offset:{wv*4096+1024}")
    for wv in range(1, 8):
        a(f"s_waitcnt lgkmcnt({14-2*wv})")
        for i in range(8):
            a(f"v_add_f32 v{R+i}, v{R+i}, v{R+8*wv+i}")
    a("s_waitcnt vmcnt(0)")
    for d in range(4):
        a(f"v_lshlrev_b32 v16, 16, v{B2+d}\nv_and_b32 v17, 0xffff0000, v{B2+d}")
        a(f"v_add_f32 v{R+2*d}, v{R+2*d}, v16\nv_add_f32 v{R+2*d+1}, v{R+2*d+1}, v17")
        a(f"v_lshlrev_b32 v16, 16, v{HR+d}\nv_and_b32 v17, 0xffff0000, v{HR+d}")
        a(f"v_add_f32 v{R+2*d}, v{R+2*d}, v16\nv_add_f32 v{R+2*d+1}, v{R+2*d+1}, v17")
    for d in range(4):
        a(f"v_cvt_pk_bf16_f32 v{20+d}, v{R+2*d}, v{R+2*d+1}")
    a(f"buffer_store_dwordx4 {vr(20)}, v6, s[16:19], s36 offen")
    a("K5_END:\ns_endpgm")


def build(kernels, launches):
    a = Asm()
    for (k, grid, block, lds) in launches:
        a(f"; @launch kernel={k} grid=({grid},1,1) block=({block},1,1) lds={lds}")
    a('.amdgcn_target "amdgcn-amd-amdhsa--gfx950"')
    a(".text")
    for (name, emit, vg) in kernels:
        emit(a)
    a('.section .rodata,"a"')
    for (name, emit, vg) in kernels:
        a(kernel_desc(name, vg))
    return a.text()

if __name__ == "__main__":
    out = sys.argv[1] if len(sys.argv) > 1 else "out.s"
    if "--stamps" in sys.argv: STAMPS = True
    kernels = [("k1_kernel", emit_k1, 256 if STAMPS else 128), ("k2_kernel", emit_k2, 256 if STAMPS else 152),
               ("k3_kernel", emit_k3, 256 if STAMPS else 72), ("k4_kernel", emit_k4, 256 if STAMPS else 240), ("k5_kernel", emit_k5, 256 if STAMPS else 240)]
    launches = [("k1_kernel", 256, 512, 156160), ("k2_kernel", 256, 512, 81920), ("k3_kernel", 256, 512, 73728),
                ("k4_kernel", 256, 512, 57856), ("k5_kernel", 256, 512, 131072)]
    if "--only1" in sys.argv:
        kernels = kernels[:1]; launches = launches[:1]
    open(out, "w").write(build(kernels, launches))
```
